```python
import torch

def _softmax(x, axis=-1):
    return torch.softmax(x, dim=axis)
def _gelu(x):
    return torch.nn.functional.gelu(x, approximate="tanh")
def _silu(x):
    return torch.nn.functional.silu(x)
def _sigmoid(x):
    return torch.sigmoid(x)
def _layernorm(x, axis=-1, eps=1e-5):
    m = x.mean(dim=axis, keepdim=True)
    v = x.var(dim=axis, keepdim=True, unbiased=False)
    return (x - m) / torch.sqrt(v + eps)
def _scatter_add(tgt, idx, src, axis=0):
    return tgt.clone().index_add_(axis, idx, src)
def _segment_sum(src, seg, n):
    out = torch.zeros((n,) + src.shape[1:], dtype=src.dtype)
    return out.index_add_(0, seg, src)
def _pad(x, pw):
    flat = tuple(v for pair in reversed(pw) for v in pair)
    return torch.nn.functional.pad(x, flat)

kernel_name = 'parallel_sum__mha_block_cached__swiglu_ffn__decode'

def setup_inputs():

    _w = (lambda a: (lambda t: t.to(torch.bfloat16) if t.is_floating_point() else t)(torch.as_tensor(a)))
    def _A_setup():
        B, Sq, D = 1, 1, 640
        H, Sk, Dh = 32, 16384, 128
        return {
            "x": _w((lambda *s: torch.randn(*s, dtype=torch.bfloat16) * 0.05)(B, Sq, D)),
            "k_cache": _w((lambda *s: torch.randn(*s, dtype=torch.bfloat16) * 3.2)(B, H, Sk, Dh)),
            "v_cache": _w((lambda *s: torch.randn(*s, dtype=torch.bfloat16) * 1.6)(B, H, Sk, Dh)),
            "wq": _w((lambda *s: torch.randn(*s, dtype=torch.bfloat16) * 3.2)(D, H * Dh) * (D ** -0.5)),
            "wo": _w((lambda *s: torch.randn(*s, dtype=torch.bfloat16) * 1.6)(H * Dh, D) * ((H * Dh) ** -0.5)),
        }
    _A_in = _A_setup()

    def _B_setup():
        B, S, D, F = 1, 1, 640, 1728
        return {
            "x": _w((lambda *s: torch.randn(*s, dtype=torch.bfloat16) * 0.05)(B, S, D)),
            "w_gate": _w((lambda *s: torch.randn(*s, dtype=torch.bfloat16) * 0.05)(D, F)),
            "w_up": _w((lambda *s: torch.randn(*s, dtype=torch.bfloat16) * 0.05)(D, F)),
            "w_down": _w((lambda *s: torch.randn(*s, dtype=torch.bfloat16) * 0.05)(F, D)),
        }
    _B_in = _B_setup()

    return {
        "A_x": _A_in["x"],
        "A_k_cache": _A_in["k_cache"],
        "A_v_cache": _A_in["v_cache"],
        "A_wq": _A_in["wq"],
        "A_wo": _A_in["wo"],
        "B_x": _B_in["x"],
        "B_w_gate": _B_in["w_gate"],
        "B_w_up": _B_in["w_up"],
        "B_w_down": _B_in["w_down"],
    }

def reference(A_x, A_k_cache, A_v_cache, A_wq, A_wo, B_x, B_w_gate, B_w_up, B_w_down):
    def _A_ref(x, k_cache, v_cache, wq, wo):
        B, Sq, D = x.shape
        H, Dh = 32, 128
        q = (lambda x, *d: x.permute(*d))((x @ wq).reshape(B, Sq, H, Dh), 0, 2, 1, 3)
        scores = torch.einsum("bhqd,bhkd->bhqk", q, k_cache) * (Dh ** -0.5)
        p = _softmax(scores, axis=-1)
        o = torch.einsum("bhqk,bhkd->bhqd", p, v_cache)
        return (lambda x, *d: x.permute(*d))(o, 0, 2, 1, 3).reshape(B, Sq, H * Dh) @ wo

    def _B_ref(x, w_gate, w_up, w_down):
        g = _silu(x @ w_gate)
        u = x @ w_up
        return (g * u) @ w_down

    x = A_x
    xn = _layernorm(x, axis=-1)
    return x + _A_ref(xn, A_k_cache, A_v_cache, A_wq, A_wo) + _B_ref(xn, B_w_gate, B_w_up, B_w_down)
```

```python
import re
TRANS = ("v_exp_f32", "v_log_f32", "v_rcp_f32", "v_rsq_f32", "v_sqrt_f32", "v_sin_f32", "v_cos_f32")
def regs(tok):
    tok = tok.strip()
    m = re.fullmatch(r"([vs])(\d+)", tok)
    if m: return {(m.group(1), int(m.group(2)))}
    m = re.fullmatch(r"([vs])\[(\d+):(\d+)\]", tok)
    if m: return {(m.group(1), i) for i in range(int(m.group(2)), int(m.group(3)) + 1)}
    if tok == "vcc": return {("s", 106), ("s", 107)}
    if tok == "exec": return {("s", 126), ("s", 127)}
    return set()
def parse(line):
    l = line.split(";")[0].strip()
    if not l or l.endswith(":") or l.startswith("."): return None
    p = l.split(None, 1)
    op = p[0]
    rest = p[1] if len(p) > 1 else ""
    ops = []; cur = ""; depth = 0
    for ch in rest:
        if ch == "[": depth += 1
        if ch == "]": depth -= 1
        if ch == "," and depth == 0: ops.append(cur); cur = ""
        else: cur += ch
    ops.append(cur)
    mods = ""
    if ops:
        t = ops[-1].strip().split(None, 1)
        ops[-1] = t[0] if t else ""
        mods = t[1] if len(t) > 1 else ""
    ops = [o.strip().lstrip("-").strip("|") for o in ops]
    d = dict(op=op, w=set(), r=set(), valu=op.startswith("v_"), dpp=("_dpp" in op), mods=mods, vmem=False, wstore=set())
    base = op.replace("_dpp", "").replace("_e32", "").replace("_e64", "")
    d["base"] = base
    d["mfma"] = op.startswith("v_mfma")
    d["noct"] = "noct" in line
    if d["mfma"]:
        d["valu"] = False
        d["w"] = regs(ops[0]); d["ab"] = regs(ops[1]) | regs(ops[2]); d["c"] = regs(ops[3]); d["r"] = d["ab"] | d["c"]
    elif op.startswith("v_"):
        if base.startswith("v_permlane") or base == "v_swap_b32":
            d["w"] = regs(ops[0]) | regs(ops[1]); d["r"] = set(d["w"])
        else:
            d["w"] = regs(ops[0])
            for o in ops[1:]: d["r"] |= regs(o)
            if base.startswith("v_dot2c") or base in ("v_fmac_f32", "v_writelane_b32"): d["acc"] = regs(ops[0])
            if d["dpp"] : d["r"] |= regs(ops[0])
            if base == "v_cndmask_b32" and len(ops) == 3: d["r"] |= regs("vcc")
    elif op.startswith("buffer_") or op.startswith("global_"):
        d["vmem"] = True
        if "load" in op:
            d["w"] = regs(ops[0])
            for o in ops[1:]: d["r"] |= regs(o)
        else:
            for o in ops: d["r"] |= regs(o)
            if "x4" in op or "x3" in op:
                d["wstore"] = regs(ops[0]) if op.startswith("buffer_") else regs(ops[1])
    elif op.startswith("ds_"):
        if "read" in op:
            d["w"] = regs(ops[0])
            for o in ops[1:]: d["r"] |= regs(o)
        else:
            for o in ops: d["r"] |= regs(o)
    elif op == "s_nop":
        d["nop"] = int(ops[0]) + 1
    return d
def pad(lines):
    out = []; hist = []
    npad = 0
    for line in lines:
        d = parse(line)
        if d is None:
            out.append(line); continue
        need = 0
        dist = 0
        for h in reversed(hist):
            if dist >= 10: break
            req = 0
            vw = {x for x in h["w"] if x[0] == "v"}; sw = {x for x in h["w"] if x[0] == "s"}
            rd = d["r"] | d.get("acc", set())
            if h["valu"]:
                if d["dpp"] and (vw & rd): req = max(req, 2)
                if d["base"].startswith("v_permlane") and (vw & rd): req = max(req, 2)
                if d["base"] in ("v_readlane_b32", "v_readfirstlane_b32") and (vw & rd): req = max(req, 1)
                if h["base"] in TRANS and d["valu"] and (vw & rd): req = max(req, 1)
                if h["base"].startswith("v_dot2"):
                    if d["base"] == h["base"]:
                        if vw & (d["r"] - (d.get("acc", set()) if True else set())): req = max(req, 3)
                    else:
                        if vw & rd: req = max(req, 3)
                        if d["valu"] and (vw & d["w"]): req = max(req, 3)
                if d["valu"] and (sw & rd): req = max(req, 2)
                if d["base"] in ("v_readlane_b32", "v_writelane_b32") and (sw & rd): req = max(req, 4)
                if d["vmem"] and (sw & rd): req = max(req, 5)
            if h["valu"] and d["mfma"] and (vw & rd): req = max(req, 2)
            if h["mfma"]:
                if d["mfma"]:
                    if vw & d["ab"]: req = max(req, 8)
                    if (vw & d["c"]) and vw != d["c"]: req = max(req, 6)
                else:
                    if vw & (rd | d["w"]): req = max(req, 8)
                    if d["valu"] and (h["c"] & d["w"]): req = max(req, 3)
            if h["wstore"] and (h["wstore"] & d["w"]): req = max(req, 2)
            need = max(need, req - dist)
            dist += 0 if h["noct"] else h.get("nop", 1)
        if need > 0:
            out.append(f"s_nop {need-1}"); hist.append(parse(f"s_nop {need-1}")); npad += 1
        out.append(line); hist.append(d)
    return out, npad
```

```python
import sys
from asmlib import pad
NAME = "parallel_sum__mha_block_cached__swiglu_ffn__decode"
HDR = open("cdna_kernels/%s.s.ref" % NAME).read().split("; Override launch")[0]
L_Q, L_ML, L_M, L_O, L_YP, L_XN = 0, 256, 288, 512, 1024, 3072
LDS = 4608
W_Q, W_G, W_O, W_Y, W_NONCE, W_SZ = 0, 256 << 10, 512 << 10, 768 << 10, 1 << 20, 2 << 20
DM = "row_mask:0xf bank_mask:0xf"
MF = "v_mfma_f32_16x16x32_bf16"

def gen(D=6, DP=6, DV=None, stamps=False, wnt='nt', dry=7, qsl=0, osl=0, ysl=0, abl=0):
    DV = DV or D
    o = []
    SR = {0:70, 1:72, 2:74, 3:76, 8:78, 4:72, 5:74, 6:76, 7:78, 10:80, 11:82, 12:84, 13:86, 14:88, 15:90}
    def a(s):
        for l in s.split("\n"): o.append(l)
    def stamp(n):
        if stamps: a(f"s_memrealtime s[{SR[n]}:{SR[n]+1}]")
    def stamp_clr():
        if stamps:
            a("s_waitcnt lgkmcnt(0)")
            for r in range(72, 92, 2): a(f"s_mov_b64 s[{r}:{r+1}], 0")
    def stamp_out(lst):
        if not stamps: return
        a("s_waitcnt lgkmcnt(0) vmcnt(0)")
        a("s_add_u32 s26, s26, 0x10000000\ns_addc_u32 s27, s27, 0")
        a("s_mov_b64 exec, 1\ns_lshl_b32 s92, s2, 7\nv_mov_b32 v4, s92")
        for j in lst:
            a(f"v_mov_b32 v6, s{SR[j]}\nv_mov_b32 v7, s{SR[j]+1}")
            a(f"global_atomic_umax_x2 v4, v[6:7], s[26:27] offset:{8*j}\ns_nop 1")
        a("s_getreg_b32 s92, hwreg(HW_REG_XCC_ID)\nv_mov_b32 v6, s92\nv_mov_b32 v7, 0")
        a("global_store_dwordx2 v4, v[6:7], s[26:27] offset:72")
    def allred_row(op, r):
        for k in (8, 4, 2, 1): a(f"{op}_dpp v{r}, v{r}, v{r} row_ror:{k} {DM}")
    def allred_x(op, r, t):
        a(f"v_mov_b32 v{t}, v{r}\nv_permlane16_swap_b32 v{r}, v{t}\n{op} v{r}, v{r}, v{t}")
        a(f"v_mov_b32 v{t}, v{r}\nv_permlane32_swap_b32 v{r}, v{t}\n{op} v{r}, v{r}, v{t}")
    def mkmask(M, t):
        a(f"v_and_b32 v{t}, 3, v1\nv_cmp_gt_u32 vcc, 2, v{t}\nv_lshlrev_b32 v{t}, 4, v{t}\nv_mov_b32 v{M}, 0xffff\nv_lshlrev_b32 v{M}, v{t}, v{M}\nv_cndmask_b32 v{M}, 0, v{M}, vcc")
    PB, ACC, MK = 16, 20, 24
    def bld(P, i):
        for r in range(4): a(f"v_and_b32_dpp v{PB+r}, v{P}, v{MK} row_newbcast:{i} row_mask:0xf bank_mask:{1<<r}")
    def vmf(R, c0=False): a(f"{MF} v[{ACC}:{ACC+3}], v[{PB}:{PB+3}], v[{R}:{R+3}], " + ("0" if c0 else f"v[{ACC}:{ACC+3}]"))

    stamp(0)
    if stamps:
        for r in range(72, 92, 2): a(f"s_mov_b64 s[{r}:{r+1}], 0")
    a("s_load_dwordx16 s[4:19], s[0:1], 0")
    a("s_load_dwordx8 s[20:27], s[0:1], 64")
    a("s_cmp_ge_u32 s2, 256\ns_cbranch_scc1 L_end")
    a("v_lshrrev_b32 v2, 6, v0\nv_and_b32 v1, 63, v0")
    a("v_readfirstlane_b32 s3, v2")
    a(f"s_cmp_lt_u32 s3, {3 if dry & 1 else 4}\ns_cbranch_scc1 L_helper")
    S, QM, DA, RA, RB, RC = 8, 16, 32, 40, 104, 168
    a("s_and_b32 s35, s3, 3\ns_lshl_b32 s34, s2, 19\ns_lshl_b32 s47, s35, 3\ns_lshl_b32 s35, s35, 10\ns_add_u32 s34, s34, s35")
    a("v_and_b32 v4, 12, v1\nv_lshlrev_b32 v4, 6, v4\nv_and_b32 v5, 3, v1\nv_lshl_add_u32 v4, v5, 4, v4\nv_and_b32 v5, 48, v1\nv_lshl_add_u32 v4, v5, 2, v4")
    a("v_add_u32 v4, s34, v4")
    for j in range(DP): a(f"s_mov_b32 s{48+j}, {j*4096}")
    a("s_mov_b32 s38, 0x8000000\ns_mov_b32 s39, 0x20000")
    a("s_cmp_eq_u32 s3, 3")
    a("s_waitcnt lgkmcnt(0)")
    a("s_mov_b32 s36, s6\ns_mov_b32 s37, s7")
    def ld(base, i, v, s): return f"buffer_load_dwordx4 v[{base+4*i}:{base+4*i+3}], v{v}, s[{s}:{s+3}], s{48+i} offen nt"
    a("s_cbranch_scc1 L_rest")
    for n in range(48):
        if n >= DP: a(f"s_waitcnt vmcnt({DP-1})")
        a(ld(RA + 64 * (n >> 4), n & 15, (4, 3, 7)[n >> 4], 36))
        if n == DP - 1:
            a("L_rest:")
            for j in range(DP, 16): a(f"s_mov_b32 s{48+j}, {j*4096}")
            a("s_mov_b32 s40, s6\ns_mov_b32 s41, s7\ns_mov_b32 s42, 0x8000000\ns_mov_b32 s43, 0x20000")
            a("v_add_u32 v3, 0x10000, v4\nv_add_u32 v7, 0x20000, v4\nv_add_u32 v5, 0x30000, v4")
            a("v_lshlrev_b32 v2, 4, v1\nv_add_u32 v2, s34, v2")
            a("v_and_b32 v6, 60, v1\nv_lshlrev_b32 v6, 2, v6")
            a("s_cselect_b32 s44, 6, 2\ns_cselect_b32 s66, 7, 0\ns_mov_b32 s45, 0x3db504f3\ns_mov_b32 s46, 0x3fb8aa3b")
            for j in range(16): a(f"v_mov_b32 v{QM+j}, 0")
            a("s_mov_b32 s64, 0x11111111\ns_mov_b32 s65, 0x11111111")
            a("s_cselect_b64 exec, 0, -1\ns_cbranch_scc1 L_p0")
    stamp(8)
    a("s_barrier")
    for u in range(4):
        a(f"s_lshl_b64 exec, s[64:65], {u}")
        a(f"ds_read_b128 v[{QM+4*u}:{QM+4*u+3}], v6 offset:{L_Q}")
    a("s_mov_b64 exec, -1")
    stamp(1)
    a("s_waitcnt lgkmcnt(0)")
    def sh(t, r): return f"row_shl:{4*(r-t)}" if r > t else f"row_shr:{4*(t-r)}"
    def extr(t, k):
        d = DA + 4 * (t & 1); r = [x for x in range(4) if x != t][k]
        dst = 0 if k == 2 else d + t
        a(f"v_add_f32_dpp v{dst}, v{d+r}, v{d+t} {sh(t, r)} row_mask:0xf bank_mask:{1<<t}")
    def fin(dst): a(f"v_cvt_pk_bf16_f32 v0, 0, v0\nv_mul_f32 v0, s45, v0\nv_cvt_pk_bf16_f32 v{dst}, 0, v0")
    def kmf(R, i, chain=False):
        t, u = i >> 2, i & 3; d = DA + 4 * (t & 1)
        a(f"{MF} v[{d}:{d+3}], v[{R+4*i}:{R+4*i+3}], v[{QM+4*u}:{QM+4*u+3}], " + ("0" if u == 0 else f"v[{d}:{d+3}]"))
        if (t > 0 or chain) and u > 0: extr((t - 1) & 3, u - 1)
    a("L_p0:")
    for n in range(48):
        if n >= 48 - DP: a(f"s_waitcnt vmcnt({D + 47 - n})")
        kmf(RA + 64 * (n >> 4), n & 15, n >= 16)
        if n < D: a(ld(RA, n, 5, 40))
        if n in (19, 35): fin(S + 6 + (n >> 5))
    a("s_branch L_kadv")
    a("L_kloop:")
    for i in range(16):
        a(f"s_waitcnt vmcnt({D-1})")
        a(ld(RA, i + D, 4, 36) if i + D < 16 else ld(RA, i + D - 16, 5, 40))
        kmf(RA, i)
    a("L_kadv:")
    a("v_mov_b32 v4, v5\nv_add_u32 v5, 0x10000, v5")
    for i in range(7): a(f"v_mov_b32 v{S+i}, v{S+i+1}")
    a("s_add_u32 s44, s44, 1")
    for k in range(3): extr(3, k)
    fin(S + 7)
    a("s_cmp_lg_u32 s44, 7\ns_cbranch_scc1 L_knsw")
    a("s_mov_b32 s40, s8\ns_mov_b32 s41, s9\nv_mov_b32 v5, v2")
    a("L_knsw:")
    a("s_cmp_eq_u32 s44, 8\ns_cbranch_scc0 L_kloop")
    stamp(2)
    a("s_mov_b32 s36, s8\ns_mov_b32 s37, s9")
    for i in range(D, DV): a(ld(RA, i, 4, 36))
    a(f"v_max3_f32 v6, v{S}, v{S+1}, v{S+2}\nv_max3_f32 v7, v{S+3}, v{S+4}, v{S+5}\nv_max3_f32 v6, v6, v{S+6}, v{S+7}\nv_max_f32 v6, v7, v6")
    allred_row("v_max_f32", 6); allred_x("v_max_f32", 6, 7)
    for j in range(8): a(f"v_sub_f32 v{S+j}, v{S+j}, v6")
    for j in range(8): a(f"v_mul_f32 v{S+j}, s46, v{S+j}")
    for j in range(8): a(f"v_exp_f32 v{S+j}, v{S+j}")
    for j in range(8): a(f"v_mov_b32 v{PB+j}, 0")
    a(f"v_add_f32 v7, v{S}, v{S+1}\nv_add_f32 v3, v{S+2}, v{S+3}")
    for j in range(4, 8, 2): a(f"v_add_f32 v7, v7, v{S+j}\nv_add_f32 v3, v3, v{S+j+1}")
    a("v_add_f32 v7, v7, v3\nv_mul_f32 v6, s46, v6")
    for j in range(8): a(f"v_cvt_pk_bf16_f32 v{S+j}, v{S+j}, v{S+j}")
    mkmask(MK, 3)
    bld(S, 0)
    allred_row("v_add_f32", 7); allred_x("v_add_f32", 7, 3)
    a(f"v_mov_b32 v3, s47\nds_write_b64 v3, v[6:7] offset:{L_ML}")
    a("v_and_b32 v2, 15, v1\nv_lshlrev_b32 v2, 5, v2\nv_lshrrev_b32 v3, 4, v1\nv_lshl_add_u32 v2, v3, 3, v2\nv_mov_b32 v3, 0")
    def factor():
        a(f"v_max3_f32 v{RB+8}, v{RB}, v{RB+2}, v{RB+4}\nv_min3_f32 v{RB+9}, v{RB+1}, v{RB+3}, v{RB+5}")
        a(f"v_max_f32 v{RB+8}, v{RB+8}, v{RB+6}\nv_min_f32 v{RB+9}, v{RB+9}, v{RB+7}")
        a(f"v_sub_f32 v{RB+10}, v6, v{RB+8}\nv_cmp_gt_f32 vcc, 0, v{RB+9}\nv_exp_f32 v{RB+10}, v{RB+10}\nv_mul_f32 v{RB+11}, v7, v{RB+10}")
    mlrd = f"ds_read_b128 v[{RB}:{RB+3}], v3 offset:{L_ML}\nds_read_b128 v[{RB+4}:{RB+7}], v3 offset:{L_ML+16}"
    a("L_vloop:")
    a(mlrd)
    a("s_cmp_eq_u32 s66, 7\ns_cselect_b32 s42, 0, s42")
    a("s_add_u32 s66, s66, 1\ns_cmp_lt_u32 s66, 8")
    for i in range(16):
        a(f"s_waitcnt vmcnt({DV-1})")
        a(ld(RA, i + DV, 4, 36) if i + DV < 16 else ld(RA, i + DV - 16, 5, 40))
        vmf(RA + 4 * i)
        bld(S, (i + 1) & 15)
        if i == 14:
            for j in range(7): a(f"v_mov_b32 v{S+j}, v{S+j+1}")
        if i == 4:
            a("s_waitcnt lgkmcnt(0)"); factor()
        if i == 15 - DV: a("v_mov_b32 v4, v5")
    a("v_add_u32 v5, 0x10000, v5")
    a("s_cbranch_scc1 L_vloop")
    a("s_cbranch_vccnz L_mlslow")
    a("L_mlok:")
    a(f"v_mul_f32 v{ACC}, v{ACC}, v{RB+10}\nv_mul_f32 v{ACC+1}, v{ACC+1}, v{RB+10}")
    a(f"ds_add_f32 v2, v{ACC} offset:{L_O}\nds_add_f32 v2, v{ACC+1} offset:{L_O+4}")
    a(f"s_and_b64 exec, exec, 1\nds_add_f32 v3, v{RB+11} offset:{L_M+4}\nds_write_b32 v3, v{RB+8} offset:{L_M}")
    a("s_cbranch_execz L_dryret")
    a("s_waitcnt lgkmcnt(0)\ns_barrier")
    stamp(3)
    stamp_out([0, 1, 2, 3, 8])
    a("s_endpgm")
    a("L_mlslow:")
    a(mlrd); a("s_waitcnt lgkmcnt(0)"); factor()
    a("s_cbranch_vccnz L_mlslow\ns_branch L_mlok")

    W, CD, WO = 80, 32, 160
    a("L_dryret:")
    a("s_mov_b64 exec, -1"); stamp_clr()
    a("L_helper:")
    a("s_lshr_b32 s28, s2, 3\ns_and_b32 s29, s2, 7\ns_mul_i32 s34, s29, 80")
    a("v_lshrrev_b32 v8, 4, v1\nv_and_b32 v9, 15, v1\nv_add_u32 v12, s34, v8")
    a("v_lshlrev_b32 v7, 2, v1\ns_mov_b32 s38, 1280\ns_mov_b32 s39, 0x20000\ns_mov_b32 s59, 0x20000")
    a("s_cmp_eq_u32 s3, 0\ns_cbranch_scc0 L_nh0")
    a("v_lshlrev_b32 v13, 13, v12\nv_lshl_add_u32 v13, v9, 4, v13\ns_lshl_b32 s44, s28, 8\ns_mov_b32 s58, 5242880")
    a("s_waitcnt lgkmcnt(0)")
    a("s_mov_b32 s36, s4\ns_mov_b32 s37, s5\ns_mov_b32 s56, s10\ns_mov_b32 s57, s11")
    def xld():
        for k in range(5): a(f"buffer_load_dword v{2+k}, v7, s[36:39], 0 offen offset:{256*k}")
    def wld(srd, step):
        for i in range(20):
            a(f"buffer_load_dwordx4 v[{W+4*i}:{W+4*i+3}], v13, s[{srd}:{srd+3}], s44 offen {wnt}")
            if i < 19: a(f"s_add_u32 s44, s44, {step}")
    xld(); wld(56, 0x8000)
    a("L_hset:")
    a(f"s_load_dword s33, s[26:27], {W_NONCE}")
    stamp(10)
    a("v_lshl_add_u32 v12, v9, 2, v12\nv_lshlrev_b32 v12, 1, v12")
    a("v_lshlrev_b32 v31, 4, v1\nv_mov_b32 v30, 0\nv_bfrev_b32 v27, 1")
    a(f"s_mov_b32 s36, s4\ns_mov_b32 s37, s5\ns_mov_b32 s40, s26\ns_mov_b32 s41, s27\ns_mov_b32 s42, {W_SZ}\ns_mov_b32 s43, 0x20000")
    a(f"s_and_b32 s35, s3, 1\ns_lshl_b32 s35, s35, 18\ns_lshl_b32 s44, s2, 10\ns_add_u32 s44, s44, s35")
    a("s_lshl_b32 s45, s28, 13\ns_add_u32 s45, s45, s35\ns_add_u32 s47, s45, 4096")
    a("s_add_u32 s31, s28, s29\ns_and_b32 s31, s31, 7")
    for j in range(8): a(f"v_mov_b32 v{PB+j}, 0")
    mkmask(MK, 10)
    a("v_lshlrev_b32 v14, 4, v9\nv_lshl_add_u32 v14, v8, 2, v14")
    a("s_cmp_ge_u32 s3, 2\ns_cbranch_scc1 L_h23")
    a("s_cmp_lt_u32 s28, 27\ns_cselect_b32 s35, 2, 1\ns_cmp_eq_u32 s3, s35\ns_cbranch_scc1 L_b1")
    a("L_ln:")
    a("s_waitcnt vmcnt(20)")
    stamp(11)
    for k in range(5): a(f"v_lshlrev_b32 v{32+2*k}, 16, v{2+k}\nv_and_b32 v{33+2*k}, 0xffff0000, v{2+k}")
    a("v_add_f32 v2, v32, v33\nv_add_f32 v3, v34, v35")
    for k in range(2, 5): a(f"v_add_f32 v2, v2, v{32+2*k}\nv_add_f32 v3, v3, v{33+2*k}")
    a("v_add_f32 v2, v2, v3")
    allred_row("v_add_f32", 2); allred_x("v_add_f32", 2, 3)
    a("s_mov_b32 s46, 0x3acccccd\nv_mul_f32 v2, s46, v2")
    a("v_sub_f32 v4, v32, v2\nv_mul_f32 v3, v4, v4")
    for k in range(1, 10): a(f"v_sub_f32 v4, v{32+k}, v2\nv_fmac_f32 v3, v4, v4")
    allred_row("v_add_f32", 3); allred_x("v_add_f32", 3, 4)
    a("v_mul_f32 v3, s46, v3\nv_cvt_pk_bf16_f32 v2, 0, v2\nv_cvt_pk_bf16_f32 v3, 0, v3")
    a("v_add_f32 v3, 0x3727c5ac, v3\nv_cvt_pk_bf16_f32 v3, 0, v3\nv_sqrt_f32 v3, v3")
    for k in range(10): a(f"v_sub_f32 v{32+k}, v{32+k}, v2")
    a("v_cvt_pk_bf16_f32 v3, 0, v3\nv_rcp_f32 v3, v3")
    for k in range(10): a(f"v_cvt_pk_bf16_f32 v{32+k}, 0, v{32+k}")
    for k in range(10): a(f"v_mul_f32 v{32+k}, v{32+k}, v3")
    for k in range(5): a(f"v_cvt_pk_bf16_f32 v{32+k}, v{32+2*k}, v{33+2*k}\nds_write_b32 v7, v{32+k} offset:{L_XN+256*k}")
    a(f"ds_read_u16 v5, v12 offset:{L_XN}\nds_read_u16 v6, v12 offset:{L_XN+128}")
    a("s_waitcnt lgkmcnt(0)")
    a("v_lshl_or_b32 v5, v5, 16, v5\nv_lshl_or_b32 v6, v6, 16, v6")
    a("s_add_u32 s32, s33, 0x9e3779b9\nv_mov_b32 v26, s32\nv_mov_b32 v3, s32")
    for i in range(20):
        bld(5 if i < 16 else 6, i & 15)
        a(f"s_waitcnt vmcnt({19-i})")
        vmf(W + 4 * i)
    a("v_mov_b32 v5, v26")
    for i in range(8): a(f"s_mov_b64 s[{48+2*i}:{49+2*i}], exec")
    a("s_mov_b64 s[64:65], exec")
    a(f"v_mov_b32 v2, v{ACC}\nv_mov_b32 v4, v{ACC+1}")
    a(f"buffer_store_dwordx4 v[2:5], v31, s[40:43], s44 offen sc1")
    stamp(13)
    a("s_cmp_eq_u32 s3, 1\ns_cbranch_scc0 L_gath")
    a("s_barrier")
    a("s_cmp_lt_u32 s31, 5\ns_cbranch_scc0 L_bg")
    a("L_gath:")
    if qsl: a(f"s_sleep {qsl}")
    for i in range(8):
        a(f"s_mov_b64 exec, s[{48+2*i}:{49+2*i}]")
        a(f"buffer_load_dwordx4 v[{CD+4*i}:{CD+4*i+3}], v31, s[40:43], s{45 if i < 4 else 47} offen offset:{1024*(i%4)} sc1")
    a("s_mov_b64 exec, s[64:65]\ns_mov_b64 vcc, 0")
    for i in range(8):
        a(f"s_waitcnt vmcnt({7-i})")
        a(f"v_bitop3_b32 v2, v{CD+4*i+1}, v{CD+4*i+3}, v26 bitop3:0x7e\nv_cmp_ne_u32 s[{48+2*i}:{49+2*i}], 0, v2")
        if i == 0: a(f"v_mov_b32 v3, v{CD}\nv_mov_b32 v4, v{CD+2}")
        else: a(f"v_add_f32 v3, v3, v{CD+4*i}\nv_add_f32 v4, v4, v{CD+4*i+2}")
        a(f"s_or_b64 vcc, vcc, s[{48+2*i}:{49+2*i}]")
    a("s_cbranch_scc1 L_gath")
    a("s_cmp_eq_u32 s3, 1\ns_cbranch_scc1 L_ffn")
    a(f"v_cvt_pk_bf16_f32 v2, v3, v4\nds_write_b32 v14, v2 offset:{L_Q}")
    stamp(4)
    a("s_mov_b64 exec, -1")
    a("L_b1:")
    a("s_waitcnt lgkmcnt(0)\ns_barrier")
    for j in range(4): a(f"v_mov_b32 v{ACC+j}, 0")
    a("L_bg:\ns_mov_b64 exec, -1")
    if abl == 1: a("s_barrier\ns_endpgm")
    a("s_add_u32 s32, s33, 0x9e3779b9\nv_mov_b32 v26, s32")
    a("s_mov_b32 s56, s12\ns_mov_b32 s57, s13\ns_mov_b32 s59, 0x20000")
    a("s_cmp_lt_u32 s31, 5\ns_cselect_b32 s58, 5242880, 0\ns_cselect_b32 s67, 2, 0")
    a("s_lshl_b32 s34, s28, 2\ns_add_u32 s34, s34, s3\ns_mul_i32 s34, s34, 40960\ns_lshl_b32 s35, s31, 8\ns_add_u32 s34, s34, s35")
    a("v_mul_u32_u24 v13, 1280, v8\nv_lshl_add_u32 v13, v9, 4, v13")
    for g in range(8):
        a(f"buffer_load_dwordx4 v[{WO+4*g}:{WO+4*g+3}], v13, s[56:59], s34 offen {wnt}")
        if g < 7: a("s_add_u32 s34, s34, 5120")
    a(f"s_lshl_b32 s44, s2, 9\ns_add_u32 s44, s44, {W_O}")
    a(f"s_lshl_b32 s45, s28, 12\ns_lshl_b32 s35, s3, 7\ns_add_u32 s45, s45, s35\ns_add_u32 s45, s45, {W_O}")
    a(f"s_mul_i32 s46, s28, 5\ns_add_u32 s46, s46, s31\ns_lshl_b32 s46, s46, 10\ns_add_u32 s46, s46, {W_Y}")
    a("v_cmp_gt_u32 vcc, 32, v1\nv_and_b32 v10, 7, v1\nv_lshrrev_b32 v11, 3, v1\nv_lshlrev_b32 v11, 9, v11\nv_lshl_add_u32 v10, v10, 4, v11")
    a("v_cndmask_b32 v11, v27, v31, vcc\nv_and_b32 v12, 1, v1\nv_lshlrev_b32 v12, 2, v12\nv_and_b32 v28, 0x1f0, v31")
    a("v_lshlrev_b32 v13, 6, v9\nv_lshl_add_u32 v13, v8, 4, v13")
    a("s_lshl_b32 s35, s3, 9\nv_lshlrev_b32 v29, 3, v1\nv_add_u32 v14, s35, v29")
    a("s_mul_i32 s34, s28, 3\ns_add_u32 s34, s34, s31\ns_sub_u32 s34, s34, 5")
    a("s_cmp_lt_u32 s31, 5\ns_cselect_b32 s34, 80, s34\ns_cmp_eq_u32 s3, 1\ns_cselect_b32 s34, s34, 80")
    a("s_cmp_lt_u32 s34, 80\ns_cselect_b32 s35, 4, 0\ns_or_b32 s67, s67, s35\ns_cmp_eq_u32 s3, 0\ns_cselect_b32 s35, 1, 0\ns_or_b32 s67, s67, s35")
    a(f"s_lshl_b32 s47, s34, 6\ns_add_u32 s47, s47, {W_Y}\ns_add_u32 s68, s47, {16*5120}")
    a("v_lshrrev_b32 v15, 2, v1\nv_mul_u32_u24 v15, 5120, v15\nv_and_b32 v2, 3, v1\nv_lshl_add_u32 v15, v2, 4, v15")
    a("v_lshlrev_b32 v2, 2, v2\nv_lshrrev_b32 v3, 5, v1\nv_lshl_add_u32 v2, v3, 1, v2\ns_lshl_b32 s35, s34, 4\nv_add_u32 v2, s35, v2")
    a("v_and_b32 v3, 28, v1\nv_cmp_eq_u32 vcc, 0, v3\nv_cndmask_b32 v7, v27, v2, vcc")
    a("buffer_load_ushort v25, v7, s[36:39], 0 offen")
    a(f"v_add_u32 v2, s34, v1\nv_cmp_eq_u32 vcc, 0, v2\nv_mov_b32 v6, {W_NONCE}\nv_cndmask_b32 v6, v27, v6, vcc")
    a(f"v_mov_b32 v45, v26\nv_mov_b32 v47, v26")
    a("s_waitcnt vmcnt(0)\nv_lshlrev_b32 v25, 16, v25\ns_mov_b32 s36, s22\ns_mov_b32 s37, s23")
    stamp(5)
    a("s_mov_b64 s[64:65], -1\ns_mov_b32 s66, s67")
    if dry & 4:
        a("s_cmp_eq_u32 s3, 3\ns_cbranch_scc0 L_tail")
        a("s_mov_b64 s[64:65], 0\ns_mov_b64 exec, 0\ns_mov_b32 s66, 7\ns_branch L_t1")
    a("L_tail:")
    a("s_barrier")
    stamp(15)
    if abl == 2: a("s_branch L_hend")
    a("L_t1:")
    a("s_bitcmp1_b32 s66, 0\ns_cbranch_scc0 L_nopub")
    a(f"ds_read_b128 v[{CD}:{CD+3}], v28 offset:{L_O}\nds_read_b32 v{CD+6}, v12 offset:{L_M}")
    a(f"s_waitcnt lgkmcnt(1)\nv_cvt_pk_bf16_f32 v{CD+4}, v{CD}, v{CD+1}\nv_cvt_pk_bf16_f32 v{CD+5}, v{CD+2}, v{CD+3}")
    a(f"v_bitop3_b32 v{CD+7}, v{CD+4}, v{CD+5}, v26 bitop3:0x96\ns_waitcnt lgkmcnt(0)\nv_xor_b32 v{CD+7}, v{CD+7}, v{CD+6}")
    a(f"buffer_store_dwordx4 v[{CD+4}:{CD+7}], v11, s[40:43], s44 offen sc1")
    a("L_nopub:")
    a("s_bitcmp1_b32 s66, 1\ns_cbranch_scc0 L_cons")
    a("L_opoll:")
    if osl: a(f"s_sleep {osl}")
    a(f"buffer_load_dwordx4 v[{CD}:{CD+3}], v10, s[40:43], s45 offen sc1\ns_waitcnt vmcnt(0)")
    a(f"v_bitop3_b32 v2, v{CD}, v{CD+1}, v{CD+2} bitop3:0x96\nv_xor_b32 v2, v2, v{CD+3}\nv_cmp_ne_u32 vcc, v2, v26")
    a("s_and_b64 exec, exec, vcc\ns_cbranch_scc1 L_opoll\ns_mov_b64 exec, s[64:65]")
    stamp(6)
    a(f"v_mov_b32_dpp v36, v34 quad_perm:[0,0,2,2] {DM}\nv_mov_b32_dpp v37, v34 quad_perm:[1,1,3,3] {DM}")
    a("v_lshlrev_b32 v38, 16, v32")
    a(f"v_max_f32_dpp v42, v36, v36 row_ror:8 {DM}")
    a("v_mov_b32 v43, v42\nv_and_b32 v39, 0xffff0000, v32\nv_lshlrev_b32 v40, 16, v33\nv_permlane16_swap_b32 v42, v43\nv_max_f32 v42, v42, v43")
    a("v_mov_b32 v43, v42\nv_and_b32 v41, 0xffff0000, v33\nv_permlane32_swap_b32 v42, v43\nv_max_f32 v42, v42, v43")
    a("v_sub_f32 v36, v36, v42\nv_exp_f32 v36, v36")
    a("v_mul_f32 v37, v37, v36\nv_mul_f32 v38, v38, v36\nv_mul_f32 v40, v40, v36\nv_mov_b32 v43, v37\nv_mul_f32 v39, v39, v36\nv_mul_f32 v41, v41, v36")
    a("v_permlane32_swap_b32 v37, v43\nv_permlane32_swap_b32 v38, v40\nv_permlane32_swap_b32 v39, v41")
    a("v_add_f32 v36, v37, v43\nv_add_f32 v37, v37, v43\nv_add_f32 v38, v38, v40\nv_add_f32 v39, v39, v41")
    a("v_permlane16_swap_b32 v36, v37\nv_permlane16_swap_b32 v38, v39")
    a("v_add_f32 v36, v36, v37\nv_add_f32 v38, v38, v39")
    a(f"v_add_f32_dpp v36, v36, v36 row_ror:8 {DM}\nv_add_f32_dpp v38, v38, v38 row_ror:8 {DM}")
    a("v_rcp_f32 v36, v36\nv_mul_f32 v38, v38, v36\nv_cvt_pk_bf16_f32 v38, v38, v38")
    for g in range(8):
        bld(38, g); vmf(WO + 4 * g)
    a(f"ds_write_b64 v14, v[{ACC}:{ACC+1}] offset:{L_YP}\ns_waitcnt lgkmcnt(0)")
    a("s_cbranch_execz L_t2\ns_barrier\nL_t2:")
    a("s_bitcmp1_b32 s66, 0\ns_cbranch_scc0 L_hend")
    for j in range(3): a(f"ds_read_b64 v[{32+2*j}:{33+2*j}], v29 offset:{L_YP+512*(j+1)}")
    a(f"s_waitcnt lgkmcnt(1)\nv_add_f32 v{ACC}, v{ACC}, v32\nv_add_f32 v{ACC+1}, v{ACC+1}, v33\nv_add_f32 v{ACC}, v{ACC}, v34\nv_add_f32 v{ACC+1}, v{ACC+1}, v35")
    a(f"s_waitcnt lgkmcnt(0)\nv_add_f32 v44, v{ACC}, v36\nv_add_f32 v46, v{ACC+1}, v37")
    a("buffer_store_dwordx4 v[44:47], v13, s[40:43], s46 offen sc1")
    stamp(12)
    a("L_cons:")
    a("s_bitcmp1_b32 s66, 2\ns_cbranch_scc0 L_hend")
    a("s_mov_b64 s[48:49], exec\ns_mov_b64 s[50:51], exec")
    a("L_ypoll:")
    if ysl: a(f"s_sleep {ysl}")
    a("s_mov_b64 exec, s[48:49]\nbuffer_load_dwordx4 v[32:35], v15, s[40:43], s47 offen sc1")
    a("s_mov_b64 exec, s[50:51]\nbuffer_load_dwordx4 v[36:39], v15, s[40:43], s68 offen sc1")
    a("s_mov_b64 exec, s[64:65]")
    a("s_waitcnt vmcnt(1)\nv_bitop3_b32 v2, v33, v35, v26 bitop3:0x7e\nv_cmp_ne_u32 s[48:49], 0, v2")
    a("s_waitcnt vmcnt(0)\nv_bitop3_b32 v2, v37, v39, v26 bitop3:0x7e\nv_cmp_ne_u32 s[50:51], 0, v2")
    a("v_add_f32 v2, v32, v36\nv_add_f32 v3, v34, v38")
    a("s_or_b64 vcc, s[48:49], s[50:51]\ns_cbranch_scc1 L_ypoll")
    a("v_permlane32_swap_b32 v2, v3\nv_add_f32 v4, v2, v3\nv_add_f32 v2, v2, v3\nv_permlane16_swap_b32 v2, v4\nv_add_f32 v2, v2, v4")
    a(f"v_add_f32_dpp v2, v2, v2 row_ror:8 {DM}\nv_add_f32_dpp v2, v2, v2 row_ror:4 {DM}")
    a("v_add_f32 v2, v2, v25\nv_cvt_pk_bf16_f32 v2, v2, v2")
    a("buffer_store_short v2, v7, s[36:39], 0 offen")
    a("buffer_store_dword v26, v6, s[40:43], 0 offen")
    stamp(7)
    a("L_hend:")
    a("s_cbranch_execz L_dry2")
    stamp_out([4, 5, 6, 7, 10, 11, 12, 13, 14, 15])
    a("L_end:\ns_endpgm")
    a("L_dry2:")
    stamp_clr()
    a("s_mov_b64 s[64:65], -1\ns_mov_b64 exec, -1\ns_mov_b32 s66, s67\ns_branch L_tail")
    a("L_nh0:")
    a("s_waitcnt lgkmcnt(0)")
    a("s_cmp_lt_u32 s28, 27\ns_cselect_b32 s35, 1, 0\ns_cmp_eq_u32 s3, s35\ns_cbranch_scc0 L_hset")
    a("v_mul_u32_u24 v13, 3456, v12\nv_and_b32 v2, 7, v1\nv_lshl_add_u32 v13, v2, 4, v13\ns_lshl_b32 s44, s28, 7\ns_mov_b32 s58, 2211840")
    a("s_mov_b32 s36, s4\ns_mov_b32 s37, s5\ns_mov_b32 s56, s16\ns_mov_b32 s57, s17")
    xld()
    a("s_mov_b32 exec_lo, 0x00ff00ff\ns_mov_b32 exec_hi, 0x00ff00ff")
    a("L_gu:")
    wld(56, 13824)
    a("s_mov_b32 s56, s18\ns_mov_b32 s57, s19\ns_lshl_b32 s44, s28, 7")
    a("s_bitcmp1_b32 exec_lo, 0\ns_mov_b32 exec_lo, 0xff00ff00\ns_mov_b32 exec_hi, 0xff00ff00\ns_cbranch_scc1 L_gu")
    a("s_mov_b64 exec, -1\ns_branch L_hset")
    a("L_h23:")
    a("s_cmp_eq_u32 s3, 2\ns_cbranch_scc0 L_b1")
    a(f"v_lshlrev_b32 v2, 3, v1\nv_mov_b32 v3, -1.0\nds_write_b64 v2, v[{PB}:{PB+1}] offset:{L_O}\nds_write_b32 v30, v30 offset:{L_M+4}")
    a(f"v_and_b32 v2, 24, v2\nds_write_b32 v2, v3 offset:{L_ML+4}")
    if dry & 2: a("s_mov_b64 exec, 0\ns_branch L_ln")
    else: a("s_branch L_b1")
    a("L_ffn:\ns_mov_b64 exec, -1")
    stamp(14)
    a("s_mov_b32 s56, s20\ns_mov_b32 s57, s21\ns_mov_b32 s58, 2211840\ns_mov_b32 s59, 0x20000")
    a("s_mul_i32 s34, s28, 81920\ns_lshl_b32 s35, s31, 8\ns_add_u32 s34, s34, s35")
    a("v_mul_u32_u24 v13, 2560, v8\nv_lshl_add_u32 v13, v9, 4, v13")
    for n in range(8):
        for r in range(2): a(f"buffer_load_dwordx4 v[{W+8*n+4*r}:{W+8*n+4*r+3}], v13, s[56:59], s34 offen offset:{1280*r} {wnt}")
        if n < 7: a("s_add_u32 s34, s34, 10240")
    a("v_cvt_pk_bf16_f32 v3, 0, v3\nv_cvt_pk_bf16_f32 v4, 0, v4")
    for g, t in ((3, 5), (4, 6)):
        a(f"v_mul_f32 v{t}, 0xbfb8aa3b, v{g}\nv_exp_f32 v{t}, v{t}\nv_add_f32 v{t}, 1.0, v{t}\nv_rcp_f32 v{t}, v{t}\nv_mul_f32 v{t}, v{g}, v{t}")
        a(f"v_cvt_pk_bf16_f32 v{t}, 0, v{t}\nv_mul_f32_dpp v{t}, v{g}, v{t} row_ror:8 {DM}\nv_cvt_pk_bf16_f32 v{t}, v{t}, v{t}")
    a("s_waitcnt vmcnt(0)")
    for n in range(8):
        for r in range(2):
            bld(5 + r, n); vmf(W + 8 * n + 4 * r, n + r == 0)
    a("s_branch L_bg")
    body, npad = pad(o)
    head = HDR + ("; STAMPS XCCID\n" if stamps else "") + f"; @launch grid=(256,1,1) block=(512,1,1) lds={LDS}\n"
    head += '.amdgcn_target "amdgcn-amd-amdhsa--gfx950"\n.text\n.globl %s_kernel\n.p2align 8\n.type %s_kernel,@function\n%s_kernel:\n' % (NAME, NAME, NAME)
    tail = f""".section .rodata,"a"
.p2align 6
.amdhsa_kernel {NAME}_kernel
  .amdhsa_next_free_vgpr 232
  .amdhsa_next_free_sgpr 96
  .amdhsa_accum_offset 232
  .amdhsa_group_segment_fixed_size 0
  .amdhsa_kernarg_size 96
  .amdhsa_user_sgpr_count 2
  .amdhsa_user_sgpr_kernarg_segment_ptr 1
  .amdhsa_system_sgpr_workgroup_id_x 1
  .amdhsa_float_denorm_mode_32 3
.end_amdhsa_kernel
"""
    return head + "\n".join(("    " + l if not l.endswith(":") else l) for l in body) + "\n" + tail
if __name__ == "__main__":
    import json
    open("cdna_kernels/%s.s" % NAME, "w").write(gen())
    cfgs = json.loads(sys.argv[1]) if len(sys.argv) > 1 else {"k_st": {}}
    for k, c in cfgs.items(): open(f"exp/{k}.s", "w").write(gen(stamps=True, **c))
    print(" ".join(k + ".s" for k in cfgs)); print(", ".join('"exp/%s.s"' % k for k in cfgs))
```
